```python
import torch

def _softmax(x, axis=-1):
    return torch.softmax(x, dim=axis)
def _gelu(x):
    return torch.nn.functional.gelu(x, approximate="tanh")
def _silu(x):
    return torch.nn.functional.silu(x)
def _sigmoid(x):
    return torch.sigmoid(x)
def _layernorm(x, axis=-1, eps=1e-5):
    m = x.mean(dim=axis, keepdim=True)
    v = x.var(dim=axis, keepdim=True, unbiased=False)
    return (x - m) / torch.sqrt(v + eps)
def _scatter_add(tgt, idx, src, axis=0):
    return tgt.clone().index_add_(axis, idx, src)
def _segment_sum(src, seg, n):
    out = torch.zeros((n,) + src.shape[1:], dtype=src.dtype)
    return out.index_add_(0, seg, src)
def _pad(x, pw):
    flat = tuple(v for pair in reversed(pw) for v in pair)
    return torch.nn.functional.pad(x, flat)

kernel_name = 'gated_mix__mha_block__glu_gated_reglu__prompt'

def setup_inputs():

    _w = (lambda a: (lambda t: t.to(torch.bfloat16) if t.is_floating_point() else t)(torch.as_tensor(a)))
    def _A_setup():
        B, S, D, H = 1, 2048, 512, 32
        return {
            "x": _w((lambda *s: torch.randn(*s, dtype=torch.bfloat16) * 0.05)(B, S, D)),
            "wqkv": _w((lambda *s: torch.randn(*s, dtype=torch.bfloat16) * 0.8)(D, 3 * D)),
            "wo": _w((lambda *s: torch.randn(*s, dtype=torch.bfloat16) * 0.05)(D, D)),
        }
    _A_in = _A_setup()

    def _B_setup():
        B, S, D, F = 1, 2048, 512, 1792
        return {
            "x": _w((lambda *s: torch.randn(*s, dtype=torch.bfloat16) * 0.05)(B, S, D)),
            "W_gate": _w((lambda *s: torch.randn(*s, dtype=torch.bfloat16) * 1.6)(D, F) * (2.0 / D) ** 0.5),
            "W_up": _w((lambda *s: torch.randn(*s, dtype=torch.bfloat16) * 1.6)(D, F) * (2.0 / D) ** 0.5),
            "W_down": _w((lambda *s: torch.randn(*s, dtype=torch.bfloat16) * 1.6)(F, D) * (1.0 / F) ** 0.5),
        }
    _B_in = _B_setup()

    return {
        "A_x": _A_in["x"],
        "A_wqkv": _A_in["wqkv"],
        "A_wo": _A_in["wo"],
        "B_x": _B_in["x"],
        "B_W_gate": _B_in["W_gate"],
        "B_W_up": _B_in["W_up"],
        "B_W_down": _B_in["W_down"],
        "gate_w": _w((lambda *s: torch.randn(*s, dtype=torch.bfloat16) * 0.05)(512) * 16.0),
    }

def reference(A_x, A_wqkv, A_wo, B_x, B_W_gate, B_W_up, B_W_down, gate_w):
    def _A_ref(x, wqkv, wo):
        B, S, D = x.shape
        H = 32
        Dh = D // H
        qkv = (lambda x, *d: x.permute(*d))((x @ wqkv).reshape(B, S, 3, H, Dh), 2, 0, 3, 1, 4)
        q, k, v = qkv[0], qkv[1], qkv[2]
        scores = torch.einsum("bhqd,bhkd->bhqk", q, k) * (Dh ** -0.5)
        p = _softmax(scores, axis=-1)
        o = torch.einsum("bhqk,bhkd->bhqd", p, v)
        return (lambda x, *d: x.permute(*d))(o, 0, 2, 1, 3).reshape(B, S, D) @ wo

    def _B_ref(x, W_gate, W_up, W_down):
        gate = torch.einsum("bsd,df->bsf", x, W_gate)
        up = torch.einsum("bsd,df->bsf", x, W_up)
        gate = gate * (lambda x, dt: x.to(dt))(gate > 0, gate.dtype)
        h = gate * up
        return torch.einsum("bsf,fd->bsd", h, W_down)

    x = A_x
    g = _sigmoid((x * gate_w).sum(-1, keepdims=True))
    a = _A_ref(x, A_wqkv, A_wo)
    b = _B_ref(x, B_W_gate, B_W_up, B_W_down)
    return g * a + (1 - g) * b
```

```python
import re

class Seg:
    def __init__(self, name): self.name = name; self.lines = []
    def e(self, s):
        for l in s.strip("\n").split("\n"):
            l = l.strip()
            if l: self.lines.append(l)
    def __call__(self, s): self.e(s)
    def nop(self, n):
        while n > 0:
            k = min(n, 16); self.e(f"s_nop {k-1}"); n -= k
    def text(self):
        out = []
        for l in self.lines:
            if l.endswith(":") or l.startswith(".") : out.append(l)
            else: out.append("    " + l)
        return "\n".join(out) + "\n"

def vr(a, n=1): return f"v{a}" if n == 1 else f"v[{a}:{a+n-1}]"
def sr(a, n=1): return f"s{a}" if n == 1 else f"s[{a}:{a+n-1}]"

class Regs:
    def __init__(self, start, limit, kind="v"):
        self.next = start; self.limit = limit; self.kind = kind; self.names = {}
    def alloc(self, name, n=1, align=1):
        if n >= 2 and align < 2: align = 2
        a = (self.next + align - 1)//align*align
        self.next = a + n
        assert self.next <= self.limit, f"out of {self.kind} registers at {name}: {self.next} > {self.limit}"
        self.names[name] = (a, n)
        return a

_reg_re = re.compile(r"^(-?)(abs\()?([vsa])(\d+)\)?$")
_rng_re = re.compile(r"^(-?)([vsa])\[(\d+):(\d+)\]$")
def regs_of(tok):
    tok = tok.strip()
    m = _reg_re.match(tok)
    if m: return [(m.group(3), int(m.group(4)))]
    m = _rng_re.match(tok)
    if m: return [(m.group(2), i) for i in range(int(m.group(3)), int(m.group(4))+1)]
    if tok == "vcc": return [("s", "vcc")]
    if tok == "exec": return [("s", "exec")]
    if tok == "m0": return [("s", "m0")]
    return []

TRANS = ("v_exp_f32","v_log_f32","v_rcp_f32","v_rsq_f32","v_sqrt_f32","v_sin_f32","v_cos_f32","v_exp_f16","v_rcp_iflag_f32")
class I:
    def __init__(self, line):
        self.line = line
        s = line.split(";")[0].strip()
        self.s = s
        parts = s.split(None, 1)
        self.op = parts[0] if parts else ""
        rest = parts[1] if len(parts) > 1 else ""
        ops = []; cur = ""; depth = 0
        for ch in rest:
            if ch == "[": depth += 1
            if ch == "]": depth -= 1
            if ch == "," and depth == 0: ops.append(cur.strip()); cur = ""
            else: cur += ch
        if cur.strip(): ops.append(cur.strip())
        self.mods = ""
        if ops:
            last = ops[-1].split(None, 1)
            ops[-1] = last[0]
            self.mods = last[1] if len(last) > 1 else ""
        self.ops = ops
        self.kind = "other"; self.w = []; self.r = []
        op = self.op
        R = lambda idx: [x for i in idx if i < len(ops) for x in regs_of(ops[i])]
        n = len(ops)
        if s.endswith(":") or s.startswith(".") or not op: self.kind = "label"
        elif op.startswith("v_mfma"):
            self.kind = "mfma"; self.w = R([0]); self.A = R([1]); self.B = R([2]); self.C = R([3]); self.r = self.A+self.B+self.C
            self.passes = 8 if "32x32" in op else 4
        elif op.startswith("v_cmp"):
            self.kind = "valu"; self.w = R([0]); self.r = R(range(1, n))
        elif op.startswith("v_readfirstlane") or op.startswith("v_readlane"):
            self.kind = "valu"; self.w = R([0]); self.r = R(range(1, n)); self.rdl = True
        elif op.startswith("v_permlane"):
            self.kind = "valu"; self.w = R([0,1]); self.r = R([0,1])
        elif op.startswith("v_add_co") or op.startswith("v_sub_co") or op.startswith("v_addc_co"):
            self.kind = "valu"; self.w = R([0,1]); self.r = R(range(2, n))
        elif op.startswith("v_"):
            self.kind = "trans" if op.replace("_e32","").replace("_e64","") in TRANS else "valu"
            self.w = R([0]); self.r = R(range(1, n))
            if op.startswith(("v_fmac","v_dot2c","v_mac","v_pk_fmac")) or "UNUSED_PRESERVE" in self.mods or op.startswith("v_writelane"): self.r += R([0])
            if op.startswith("v_cndmask") and n == 3: self.r += [("s","vcc")]
        elif op.startswith("ds_read") or op.startswith("ds_bpermute") or op.startswith("ds_swizzle") or (op.startswith("ds_") and "rtn" in op):
            self.kind = "ds_read"; self.w = R([0]); self.r = R(range(1, n))
        elif op.startswith("ds_"):
            self.kind = "ds_write"; self.r = R(range(0, n))
        elif op.startswith("buffer_load"):
            if re.search(r"\blds\b", self.mods): self.kind = "dma"; self.r = R(range(0, n)) + [("s","m0")]
            else: self.kind = "vm_load"; self.w = R([0]); self.r = R(range(1, n))
        elif op.startswith("buffer_store"):
            self.kind = "vm_store"; self.r = R(range(0, n)); self.data = R([0])
        elif op.startswith("buffer_atomic"):
            self.kind = "vm_store"; self.r = R(range(0, n)); self.data = R([0])
            if "sc0" in self.mods: self.kind = "vm_load"; self.w = R([0])
        elif op.startswith("global_load_lds"):
            self.kind = "dma"; self.r = R(range(0, n)) + [("s","m0")]
        elif op.startswith("global_load"):
            self.kind = "vm_load"; self.w = R([0]); self.r = R(range(1, n))
        elif op.startswith("global_store"):
            self.kind = "vm_store"; self.r = R(range(0, n)); self.data = R([1])
        elif op.startswith("buffer_wbl2") or op.startswith("buffer_inv"):
            self.kind = "vm_store"; self.data = []
        elif op == "s_waitcnt": self.kind = "wait"
        elif op == "s_nop": self.kind = "nop"
        elif op.startswith("s_load") or op.startswith("s_memtime") or op.startswith("s_memrealtime"):
            self.kind = "smem"; self.w = R([0]); self.r = R(range(1, n))
        elif op.startswith("s_cbranch") or op == "s_branch": self.kind = "branch"
        elif op.startswith("s_cmp") or op.startswith("s_bitcmp"): self.kind = "salu"; self.r = R(range(0, n))
        elif op in ("s_barrier","s_endpgm","s_setprio","s_sleep"): self.kind = "misc"
        elif op.startswith("s_"):
            self.kind = "salu"; self.w = R([0]); self.r = R(range(1, n))
        else:
            raise ValueError("cannot classify: " + line)
    def states(self):
        if self.kind == "label": return 0
        if self.kind == "nop": return int(self.ops[0], 0) + 1
        return 1

def check(lines, name="", verbose=True):
    ins = [I(l) for l in lines]
    ins = [i for i in ins if i.kind != "label"]
    probs = []
    pos = [0]
    for i in ins: pos.append(pos[-1] + i.states())
    def gap(a, b): return pos[b] - pos[a+1]
    last = {}
    vmq = []; lgq = []
    V = lambda regs: [r for r in regs if r[0] in ("v","a")]
    S = lambda regs: [r for r in regs if r[0] == "s"]
    def need(tag, reg, k, n, what):
        a = last.get((tag, reg))
        if a is not None and gap(a, k) < n:
            probs.append(f"[{name}] {what}: need {n} states, have {gap(a,k)}: '{ins[a].s}' -> '{ins[k].s}'")
    for k, i in enumerate(ins):
        kind = i.kind
        for q, qn in ((vmq,"vmcnt"),(lgq,"lgkmcnt")):
            for (idx, regs) in q:
                hit = set(regs) & (set(i.r) | set(i.w))
                if hit:
                    probs.append(f"[{name}] use of {sorted(hit, key=str)[:2]} before {qn} wait: '{ins[idx].s}' -> '{i.s}'")
        if kind == "wait":
            m = re.search(r"vmcnt\((\d+)\)", i.s)
            if m:
                n = int(m.group(1)); assert n <= 63
                while len(vmq) > n: vmq.pop(0)
            m = re.search(r"lgkmcnt\((\d+)\)", i.s)
            if m:
                n = int(m.group(1)); assert n <= 15
                if n > 0 and any(ins[x[0]].kind == "smem" for x in lgq):
                    probs.append(f"[{name}] counted lgkmcnt with SMEM outstanding: {i.s}")
                while len(lgq) > n: lgq.pop(0)
        if kind in ("valu","trans"):
            for r in V(i.r)+V(i.w):
                a = last.get(("dot_w", r))
                if a is not None and ins[a].op != i.op: need("dot_w", r, k, 3, "DOT -> other VALU")
            for r in V(i.r):
                a = last.get(("mfma_w", r))
                if a is not None: need("mfma_w", r, k, 12 if ins[a].passes == 8 else 8, "MFMA D -> VALU read")
                if kind != "trans": need("trans_w", r, k, 1, "trans -> VALU")
                if i.op.startswith("v_permlane"): need("valu_w", r, k, 2, "VALU -> permlane")
                if getattr(i, "rdl", False): need("valu_w", r, k, 1, "VALU -> readlane")
                if "dpp" in i.s or "row_" in i.mods or "quad_perm" in i.mods: need("valu_w", r, k, 2, "VALU -> DPP")
            for r in V(i.w):
                a = last.get(("mfma_w", r))
                if a is not None: need("mfma_w", r, k, 12 if ins[a].passes == 8 else 8, "MFMA D -> VALU write")
                a = last.get(("mfma_c", r))
                if a is not None: need("mfma_c", r, k, 7 if ins[a].passes == 8 else 3, "MFMA C read -> VALU write")
                need("store4_data", r, k, 2, "wide store data -> VALU write")
            for r in S(i.r):
                need("valu_sw", r, k, 2, "VALU writes SGPR -> VALU reads as constant")
        if kind == "mfma":
            for r in i.A + i.B:
                need("valu_w", r, k, 2, "VALU -> MFMA A/B")
                a = last.get(("mfma_w", r))
                if a is not None: need("mfma_w", r, k, 12 if ins[a].passes == 8 else 8, "MFMA D -> MFMA A/B")
            for r in i.C:
                need("valu_w", r, k, 2, "VALU -> MFMA C")
                a = last.get(("mfma_w", r))
                if a is not None and not (ins[a].w == i.C and ins[a].passes == i.passes):
                    need("mfma_w", r, k, 10 if ins[a].passes == 8 else 6, "MFMA D -> MFMA C overlap")
            for r in i.w:
                a = last.get(("mfma_w", r))
                if a is not None and r not in i.C and not (ins[a].w == i.w):
                    need("mfma_w", r, k, 10 if ins[a].passes == 8 else 6, "MFMA D -> MFMA D (WAW, different)")
            need("valu_exec", ("s","exec"), k, 4, "VALU exec -> MFMA")
        if kind in ("ds_read","ds_write","vm_load","vm_store","dma"):
            for r in V(i.r): need("dot_w", r, k, 3, "DOT -> mem read")
            for r in V(i.r):
                a = last.get(("mfma_w", r))
                if a is not None: need("mfma_w", r, k, 12 if ins[a].passes == 8 else 8, "MFMA D -> mem read")
            for r in V(i.w):
                a = last.get(("mfma_w", r))
                if a is not None: need("mfma_w", r, k, 12 if ins[a].passes == 8 else 8, "MFMA D -> load dest")
            if kind != "ds_read" and kind != "ds_write":
                for r in S(i.r): need("valu_sw", r, k, 5, "VALU writes SGPR -> VMEM")
            if kind == "dma": need("salu_m0", ("s","m0"), k, 1, "M0 -> LDS DMA")
        if kind in ("valu","trans"):
            for r in V(i.w):
                last[("valu_w", r)] = k
                if i.op.startswith("v_dot"): last[("dot_w", r)] = k
                else: last.pop(("dot_w", r), None)
                if kind == "trans": last[("trans_w", r)] = k
                else: last.pop(("trans_w", r), None)
                last.pop(("mfma_w", r), None)
            for r in S(i.w):
                last[("valu_sw", r)] = k
                if r == ("s","exec"): last[("valu_exec", r)] = k
        if kind == "mfma":
            for r in i.w: last[("mfma_w", r)] = k; last.pop(("valu_w", r), None); last.pop(("trans_w", r), None)
            for r in i.C: last[("mfma_c", r)] = k
        if kind == "salu":
            for r in S(i.w):
                last.pop(("valu_sw", r), None)
                if r == ("s","m0"): last[("salu_m0", r)] = k
        if kind in ("ds_read","vm_load"):
            for r in V(i.w):
                last.pop(("valu_w", r), None); last.pop(("trans_w", r), None); last.pop(("mfma_w", r), None)
        if kind == "vm_store" and len(V(i.data)) >= 3:
            for r in V(i.data): last[("store4_data", r)] = k
        if kind in ("vm_load",): vmq.append((k, V(i.w)))
        if kind in ("vm_store","dma"): vmq.append((k, []))
        if kind == "ds_read": lgq.append((k, V(i.w)))
        if kind == "ds_write": lgq.append((k, []))
        if kind == "smem":
            lgq.append((k, S(i.w)))
            if len(i.w) >= 2: lgq.append((k, []))
        if len(vmq) > 63: probs.append(f"[{name}] more than 63 vmem ops outstanding at '{i.s}'")
    if verbose:
        seen = set()
        for p in probs:
            if p not in seen: print("HAZARD", p); seen.add(p)
    return probs

class Cnt:
    def __init__(self): self.q = []
    def issue(self, tag): self.q.append(tag)
    def wait_n(self, tags):
        if not isinstance(tags, (list, tuple, set)): tags = [tags]
        idx = [i for i, t in enumerate(self.q) if t in tags]
        if not idx: return None
        last = max(idx); n = len(self.q) - last - 1
        self.q = self.q[last+1:]
        return n
```

```python
from common import *
KVR = 114688
KVS = 16384

def attn_role(name, sc="", nbar_hook=None):
    R = Regs(2, 168)
    vt = R.alloc("t", 6)
    vL16 = R.alloc("L16")
    vK = R.alloc("vK"); vKn = R.alloc("vKn"); vV = R.alloc("vV"); vVn = R.alloc("vVn"); vVl = R.alloc("vVl")
    Q = R.alloc("Q", 4, 4); K = R.alloc("K", 4, 4); V0 = R.alloc("V0", 4, 4); V1 = R.alloc("V1", 4, 4)
    S = [R.alloc("S0", 16, 4), R.alloc("S1", 16, 4)]
    P = R.alloc("P", 8, 4); O = R.alloc("O", 16, 4)
    NM = R.alloc("NM", 16, 4)
    SR = Regs(S_ROLE, 68, "s")
    sHEAD, sKso, sVso, sM0, sST, sNxt, sDm, sQT = [SR.alloc(n) for n in "head kso vso m0 st nxt dm qt".split()]
    sMASK = SR.alloc("mask", 2); sCM = SR.alloc("cm", 2)
    T1, T2, T3 = S_T0+1, S_T0+2, S_T0+3
    pro = Seg("a_pro")
    pro(f"""
    s_and_b32 s{S_T0}, s{S_RB}, 3
    s_lshl_b32 s{sHEAD}, s{S_J}, 2
    s_add_u32 s{sHEAD}, s{sHEAD}, s{S_T0}
    s_lshl_b32 s{sHEAD}, s{sHEAD}, 16          ; head*65536
    s_lshr_b32 s{sQT}, s{S_RB}, 2
    s_lshl_b32 s{sQT}, s{sQT}, 3
    s_add_u32 s{sQT}, s{sQT}, s{S_W}
    s_lshl_b32 s{S_T0}, s{sQT}, 10
    s_add_u32 s{S_T0}, s{S_T0}, s{sHEAD}
    s_add_u32 s{S_T0}, s{S_T0}, {QF}
    v_lshlrev_b32 v{vL16}, 4, v1
    buffer_load_dwordx4 {vr(Q,4)}, v{vL16}, {srd(S_WS)}, s{S_T0} offen
    s_lshl_b32 s{sM0}, s{S_W}, 10
    s_add_u32 s{sKso}, s{sHEAD}, s{sM0}
    s_add_u32 s{sVso}, s{sKso}, {VF}
    s_add_u32 s{sKso}, s{sKso}, {KF}
    s_add_u32 s{sM0}, s{sM0}, {KVR}
    """)
    for s in range(2):
        dma(pro, vL16, S_WS, (sKso, s*8192), (sM0, s*KVS))
        dma(pro, vL16, S_WS, (sVso, s*8192), (sM0, s*KVS + 8192))
    pro(f"""
    v_add_u32 v{vK}, {KVR}, v{vL16}
    v_add_u32 v{vKn}, {KVR+KVS}, v{vL16}
    v_and_b32 v{vVl}, 15, v1
    v_lshlrev_b32 v{vVl}, 4, v{vVl}
    v_lshrrev_b32 v{vt}, 5, v1
    v_lshlrev_b32 v{vt}, 8, v{vt}
    v_add_u32 v{vVl}, v{vVl}, v{vt}
    v_add_u32 v{vV}, {KVR+8192}, v{vVl}
    v_add_u32 v{vVn}, {KVR+KVS+8192}, v{vVl}
    s_mov_b32 s{sMASK}, 0x0000ffff
    s_mov_b32 s{sMASK+1}, 0x0000ffff
    """)
    pro(f"""
    v_and_b32 v{vt}, 27, v1
    v_mov_b32 v{vt+1}, 0x3f803f80
    v_cmp_eq_u32 vcc, 16, v{vt}
    s_nop 1
    v_cndmask_b32 v{vt}, 0, v{vt+1}, vcc
    """)
    for r in range(4): pro(f"v_mov_b32 v{V0+r}, v{vt}\nv_mov_b32 v{V1+r}, v{vt}")
    for r in range(8): pro(f"v_mov_b32 v{P+r}, 0")
    for r in range(16): pro(f"v_mov_b32 v{O+r}, 0")
    pro(f"""
    s_mov_b32 s{sST}, 0
    s_mov_b32 s{sNxt}, {KVS}
    s_mov_b32 s{sDm}, {2*KVS}
    """)
    stamp(pro, 1)
    pro(f"""
    s_waitcnt vmcnt(2)
    s_barrier
    """)
    stamp(pro, 2)
    pro(f"""
    ds_read_b128 {vr(K,4)}, v{vK}
    s_waitcnt lgkmcnt(0)
    v_mfma_f32_32x32x16_bf16 {vr(S[0],16)}, {vr(K,4)}, {vr(Q,4)}, 0
    ds_read_b128 {vr(K,4)}, v{vK} offset:1024
    s_mov_b64 exec, s[{sMASK}:{sMASK+1}]
    ds_read_b128 {vr(V0,4)}, v{vV}
    ds_read_b128 {vr(V1,4)}, v{vV}
    s_mov_b64 exec, -1
    s_nop 7
    """)
    body = Seg("a_body"); body(f"{name}_aloop:")
    def ex(b, r): body(f"v_exp_f32 v{b+r}, v{b+r}")
    def cv(b, p): body(f"v_cvt_pk_bf16_f32 v{P+p}, v{b+2*p}, v{b+2*p+1}")
    for tau in range(8):
        cur, nxt = S[tau & 1], S[(tau+1) & 1]
        if tau == 6:
            body(f"""
            s_cmp_eq_u32 s{sST}, 7
            s_cbranch_scc1 {name}_anobar
            s_waitcnt vmcnt(0)
            s_barrier
            s_cmp_ge_u32 s{sST}, 6
            s_cbranch_scc1 {name}_anobar
            s_add_u32 s{S_T0}, s{sST}, 2
            s_lshl_b32 s{S_T0}, s{S_T0}, 13
            s_add_u32 s{T1}, s{sM0}, s{sDm}
            s_mov_b32 m0, s{T1}
            s_add_u32 s{T2}, s{sKso}, s{S_T0}
            buffer_load_dwordx4 v{vL16}, {srd(S_WS)}, s{T2} offen lds
            s_add_u32 m0, s{T1}, 8192
            s_add_u32 s{T2}, s{sVso}, s{S_T0}
            buffer_load_dwordx4 v{vL16}, {srd(S_WS)}, s{T2} offen lds
            {name}_anobar:
            """)
        body("s_waitcnt lgkmcnt(2)")
        body(f"v_mfma_f32_32x32x16_bf16 {vr(nxt,16)}, {vr(K,4)}, {vr(Q,4)}, 0")
        t2 = tau + 2
        if t2 < 8: body(f"ds_read_b128 {vr(K,4)}, v{vK} offset:{t2*1024}")
        else: body(f"ds_read_b128 {vr(K,4)}, v{vKn} offset:{(t2-8)*1024}")
        for r in range(6): ex(cur, r)
        cv(cur, 0); cv(cur, 1)
        body("s_waitcnt lgkmcnt(1)")
        body(f"v_mfma_f32_32x32x16_bf16 {vr(O,16)}, {vr(V1,4)}, {vr(P+4,4)}, {vr(O,16)}")
        ex(cur, 6); ex(cur, 7); ex(cur, 8); cv(cur, 2); ex(cur, 9); cv(cur, 3); ex(cur, 10); ex(cur, 11)
        body(f"v_mfma_f32_32x32x16_bf16 {vr(O,16)}, {vr(V0,4)}, {vr(P,4)}, {vr(O,16)}")
        body(f"s_mov_b64 exec, s[{sMASK}:{sMASK+1}]")
        if tau + 1 < 8: body(f"ds_read_b128 {vr(V0,4)}, v{vV} offset:{(tau+1)*1024}")
        else: body(f"ds_read_b128 {vr(V0,4)}, v{vVn}")
        body(f"ds_read_b128 {vr(V1,4)}, v{vV} offset:{tau*1024+512}")
        body("s_mov_b64 exec, -1")
        for r in range(12, 16): ex(cur, r)
        for p in range(4, 8): cv(cur, p)
    body(f"""
    v_mov_b32 v{vK}, v{vKn}
    v_mov_b32 v{vV}, v{vVn}
    s_add_u32 s{sNxt}, s{sNxt}, {KVS}
    s_cmp_eq_u32 s{sNxt}, {3*KVS}
    s_cselect_b32 s{sNxt}, 0, s{sNxt}
    s_add_u32 s{sDm}, s{sDm}, {KVS}
    s_cmp_eq_u32 s{sDm}, {3*KVS}
    s_cselect_b32 s{sDm}, 0, s{sDm}
    s_add_u32 s{S_T0}, s{sNxt}, {KVR}
    v_add_u32 v{vKn}, s{S_T0}, v{vL16}
    s_add_u32 s{S_T0}, s{S_T0}, 8192
    v_add_u32 v{vVn}, s{S_T0}, v{vVl}
    s_add_u32 s{sST}, s{sST}, 1
    s_cmp_lt_u32 s{sST}, 8
    s_cbranch_scc1 {name}_aloop
    """)
    fin = Seg("a_fin")
    stamp(fin, 3)
    fin(f"""
    s_waitcnt lgkmcnt(0)
    v_mfma_f32_32x32x16_bf16 {vr(O,16)}, {vr(V1,4)}, {vr(P+4,4)}, {vr(O,16)}
    s_nop 11
    v_max3_f32 v{vt}, abs(v{O}), abs(v{O+1}), abs(v{O+2})
    v_max3_f32 v{vt}, abs(v{O+3}), abs(v{O+4}), v{vt}
    v_max3_f32 v{vt}, abs(v{O+5}), abs(v{O+6}), v{vt}
    v_max_f32 v{vt}, abs(v{O+7}), v{vt}
    s_mov_b32 s{S_T0}, {hex(f2u(2.0**120))}
    v_cmp_nlt_f32 vcc, v{vt}, s{S_T0}
    s_mov_b32 s{T1}, {hex(f2u(2.0**60))}
    s_mov_b32 s{T2}, {hex(f2u(2.0**-60))}
    v_cmp_nlt_f32 s[{sCM}:{sCM+1}], v{O+8}, s{T1}
    s_or_b64 vcc, vcc, s[{sCM}:{sCM+1}]
    v_cmp_ngt_f32 s[{sCM}:{sCM+1}], v{O+8}, s{T2}
    s_or_b64 vcc, vcc, s[{sCM}:{sCM+1}]
    s_cbranch_vccnz {name}_aslow
    {name}_anorm:
    v_rcp_f32 v{vt}, v{O+8}
    s_nop 0
    """)
    for r in range(8): fin(f"v_mul_f32 v{O+r}, v{vt}, v{O+r}")
    for p in range(4): fin(f"v_cvt_pk_bf16_f32 v{P+p}, v{O+2*p}, v{O+2*p+1}")
    fin(f"""
    s_lshl_b32 s{S_T0}, s{sQT}, 15
    s_lshr_b32 s{T1}, s{sHEAD}, 6
    s_add_u32 s{S_T0}, s{S_T0}, s{T1}
    s_add_u32 s{S_T0}, s{S_T0}, {OF}
    buffer_store_dwordx4 {vr(P,4)}, v{vL16}, {srd(S_WS)}, s{S_T0} offen {sc}
    """)
    slow = Seg("a_slow"); slow(f"{name}_aslow:")
    slow(f"""
    v_mov_b32 v{vt}, 0xff800000
    s_add_u32 s{T1}, s{sHEAD}, {KF}
    s_mov_b32 s{sST}, 0
    {name}_aslow1:
    buffer_load_dwordx4 {vr(K,4)}, v{vL16}, {srd(S_WS)}, s{T1} offen
    s_waitcnt vmcnt(0)
    v_mfma_f32_32x32x16_bf16 {vr(S[0],16)}, {vr(K,4)}, {vr(Q,4)}, 0
    s_nop 11
    """)
    for r in range(0, 16, 2): slow(f"v_max3_f32 v{vt}, v{S[0]+r}, v{S[0]+r+1}, v{vt}")
    slow(f"""
    s_add_u32 s{T1}, s{T1}, 1024
    s_add_u32 s{sST}, s{sST}, 1
    s_cmp_lt_u32 s{sST}, 64
    s_cbranch_scc1 {name}_aslow1
    v_mov_b32 v{vt+1}, v{vt}
    s_nop 1
    v_permlane32_swap_b32 v{vt}, v{vt+1}
    s_nop 1
    v_max_f32 v{vt}, v{vt}, v{vt+1}
    """)
    for r in range(16): slow(f"v_sub_f32 v{NM+r}, 0, v{vt}")
    for r in range(16): slow(f"v_mov_b32 v{O+r}, 0")
    slow(f"""
    s_add_u32 s{T1}, s{sHEAD}, {KF}
    s_add_u32 s{T2}, s{sHEAD}, {VF}
    s_mov_b32 s{sST}, 0
    {name}_aslow2:
    buffer_load_dwordx4 {vr(K,4)}, v{vL16}, {srd(S_WS)}, s{T1} offen
    s_mov_b64 exec, s[{sMASK}:{sMASK+1}]
    buffer_load_dwordx4 {vr(V0,4)}, v{vVl}, {srd(S_WS)}, s{T2} offen
    buffer_load_dwordx4 {vr(V1,4)}, v{vVl}, {srd(S_WS)}, s{T2} offen offset:512
    s_mov_b64 exec, -1
    s_waitcnt vmcnt(0)
    v_mfma_f32_32x32x16_bf16 {vr(S[0],16)}, {vr(K,4)}, {vr(Q,4)}, {vr(NM,16)}
    s_nop 11
    """)
    for r in range(16): slow(f"v_exp_f32 v{S[0]+r}, v{S[0]+r}")
    slow("s_nop 0")
    for p in range(8): slow(f"v_cvt_pk_bf16_f32 v{P+p}, v{S[0]+2*p}, v{S[0]+2*p+1}")
    slow(f"""
    s_nop 1
    v_mfma_f32_32x32x16_bf16 {vr(O,16)}, {vr(V0,4)}, {vr(P,4)}, {vr(O,16)}
    v_mfma_f32_32x32x16_bf16 {vr(O,16)}, {vr(V1,4)}, {vr(P+4,4)}, {vr(O,16)}
    s_add_u32 s{T1}, s{T1}, 1024
    s_add_u32 s{T2}, s{T2}, 1024
    s_add_u32 s{sST}, s{sST}, 1
    s_cmp_lt_u32 s{sST}, 64
    s_cbranch_scc1 {name}_aslow2
    s_nop 11
    s_branch {name}_anorm
    """)
    tr = pro.lines + body.lines*3 + fin.lines
    check(tr, name + ":attn")
    ib = [k for k,l in enumerate(fin.lines) if "s_cbranch_vccnz" in l][0]
    i1 = slow.lines.index(f"{name}_aslow1:"); e1 = [k for k,l in enumerate(slow.lines) if l.endswith(f"{name}_aslow1") and "cbranch" in l][0]
    i2 = slow.lines.index(f"{name}_aslow2:"); e2 = [k for k,l in enumerate(slow.lines) if l.endswith(f"{name}_aslow2") and "cbranch" in l][0]
    L = slow.lines
    tr = pro.lines + body.lines + fin.lines[:ib+1] + L[:e1+1] + L[i1:e1+1] + L[e1+1:e2+1] + L[i2:e2+1] + L[e2+1:] + fin.lines[ib+1:]
    check(tr, name + ":slow")
    return pro, body, fin, slow
```

```python
from asmgen import *
KNAME = "gated_mix__mha_block__glu_gated_reglu__prompt"
QF = 0x000000; KF = 0x200000; VF = 0x400000; OF = 0x600000
GV = 0x800000; FL = 0x810000; PF = 0x900000
WS_BYTES = 0x1800000
S_X, S_WQKV, S_WO, S_WG, S_WU, S_WD, S_GW, S_OUT, S_WS = 8, 12, 16, 20, 24, 28, 32, 36, 40
S_RB, S_J, S_W = 44, 45, 46
S_DT = 47
S_T0 = 48
S_ROLE = 52
CLOG = 0.25 * 1.4426950408889634
import struct
def f2u(f): return struct.unpack("<I", struct.pack("<f", f))[0]

def prologue(sg, endlabel, nwg=256):
    stamp_entry(sg)
    sg(f"""
    s_cmp_ge_u32 s2, {nwg}
    s_cbranch_scc1 {endlabel}
    s_load_dwordx2 s[{S_X}:{S_X+1}], s[0:1], 0
    s_load_dwordx2 s[{S_WQKV}:{S_WQKV+1}], s[0:1], 8
    s_load_dwordx2 s[{S_WO}:{S_WO+1}], s[0:1], 16
    s_load_dwordx2 s[{S_WG}:{S_WG+1}], s[0:1], 32
    s_load_dwordx2 s[{S_WU}:{S_WU+1}], s[0:1], 40
    s_load_dwordx2 s[{S_WD}:{S_WD+1}], s[0:1], 48
    s_load_dwordx2 s[{S_GW}:{S_GW+1}], s[0:1], 56
    s_load_dwordx2 s[{S_OUT}:{S_OUT+1}], s[0:1], 64
    s_load_dwordx2 s[{S_WS}:{S_WS+1}], s[0:1], 80
    v_lshrrev_b32 v2, 6, v0
    v_and_b32 v1, 63, v0
    s_lshr_b32 s{S_RB}, s2, 3
    s_and_b32 s{S_J}, s2, 7
    v_readfirstlane_b32 s{S_W}, v2
    """)
    for (r, n) in ((S_X, 2097152), (S_WQKV, 1572864), (S_WO, 524288), (S_WG, 1835008), (S_WU, 1835008),
                   (S_WD, 1835008), (S_GW, 1024), (S_OUT, 2097152), (S_WS, WS_BYTES)):
        sg(f"s_mov_b32 s{r+2}, {n}\ns_mov_b32 s{r+3}, 0x20000")
    sg("s_waitcnt lgkmcnt(0)")

def srd(r): return f"s[{r}:{r+3}]"

def dma(sg, voff, s_srd, soff, m0expr, vm=None, tag=None, extra=""):
    if isinstance(m0expr, tuple):
        sg(f"s_add_u32 m0, s{m0expr[0]}, {m0expr[1]}")
    else:
        sg(f"s_mov_b32 m0, {m0expr}")
    if isinstance(soff, tuple):
        sg(f"s_add_u32 s{S_DT}, s{soff[0]}, {soff[1]}")
        so = f"s{S_DT}"
    else:
        so = soff
        sg("s_nop 0")
    sg(f"buffer_load_dwordx4 v{voff}, {srd(s_srd)}, {so} offen lds {extra}".rstrip())
    if vm is not None: vm.issue(tag)

def kernel_text(name, segs, vgpr, sgpr=100):
    t = f".text\n.globl {name}\n.p2align 8\n.type {name},@function\n{name}:\n"
    for s in segs: t += s.text()
    return t
def descriptor(name, vgpr, sgpr=100):
    return f""".section .rodata,"a"
.p2align 6
.amdhsa_kernel {name}
  .amdhsa_next_free_vgpr {vgpr}
  .amdhsa_next_free_sgpr {sgpr}
  .amdhsa_accum_offset {(vgpr+3)//4*4}
  .amdhsa_group_segment_fixed_size 0
  .amdhsa_kernarg_size 88
  .amdhsa_user_sgpr_count 2
  .amdhsa_user_sgpr_kernarg_segment_ptr 1
  .amdhsa_system_sgpr_workgroup_id_x 1
  .amdhsa_float_denorm_mode_32 3
.end_amdhsa_kernel
"""

STAMP = {"on": False}
DBG_OFF = 0x1700000
S_ST0 = 68
def stamp(sg, k):
    if STAMP["on"]:
        b = S_ST0+4*k
        sg(f"s_waitcnt lgkmcnt(0)\ns_memrealtime s[{b}:{b+1}]\ns_memtime s[{b+2}:{b+3}]\ns_waitcnt lgkmcnt(0)")
def stamp_entry(sg):
    if STAMP["on"]: sg(f"s_memrealtime s[{S_ST0}:{S_ST0+1}]\ns_memtime s[{S_ST0+2}:{S_ST0+3}]")
def stamp_flush(sg, kidx, nst):
    if not STAMP["on"]: return
    sg(f"""
    s_waitcnt lgkmcnt(0)
    s_lshl_b32 s{S_T0}, s2, 4
    s_add_u32 s{S_T0}, s{S_T0}, s{S_W}
    s_lshl_b32 s{S_T0}, s{S_T0}, 6
    s_add_u32 s{S_T0}, s{S_T0}, {DBG_OFF + kidx*0x40000}
    v_mov_b32 v2, 0
    s_mov_b64 exec, 1
    """)
    for k in range(nst):
        sg(f"v_mov_b32 v3, s{S_ST0+4*k}\nbuffer_store_dword v3, v2, {srd(S_WS)}, s{S_T0} offen offset:{4*k}\ns_nop 1")
        sg(f"v_mov_b32 v3, s{S_ST0+4*k+2}\nbuffer_store_dword v3, v2, {srd(S_WS)}, s{S_T0} offen offset:{32+4*k}\ns_nop 1")
    sg("s_mov_b64 exec, -1")
```

```python
from common import *
from phase_q import x_read_addr, x_dma_voff, w128_dma_voff, w128_read_addr, XR
GR = 65536
GRW = 12288
G2R = 0
G2W = 16384

def load_x_tile(sg, vX, vt, waves_lo, vm=None):
    pass

def ffn_role(name, load_x, bars_g1=(), bars_g2=(), sc="", pre_bar=None):
    R = Regs(2, 168)
    acc = R.alloc("acc", 128, 4)
    xf = [R.alloc(f"xf{i}", 4, 2) for i in range(2)]
    wf = [R.alloc(f"wf{i}", 4, 2) for i in range(4)]
    XA = R.alloc("XA"); XB = R.alloc("XB")
    WA = [R.alloc("WA0"), R.alloc("WA1")]
    WC = [R.alloc("WC0"), R.alloc("WC1")]
    vD = R.alloc("vD")
    vt = R.alloc("vt", 3)
    A = lambda mt, j: acc + 16*(4*mt + j)
    SR = Regs(S_ROLE, 68, "s")
    sG, sWso, sM0, sXso, sXm0, sT, sD2 = [SR.alloc(n) for n in "g wso m0 xso xm0 t d2".split()]
    pro = Seg("g_pro")
    pro(f"s_sub_u32 s{sG}, s{S_W}, 8")
    if load_x:
        vX = wf[0]
        for par in range(2):
            pro(f"""
            v_lshrrev_b32 v{vt}, 4, v1
            v_add_u32 v{vt}, {4*par}, v{vt}
            v_and_b32 v{vt+1}, 7, v1
            v_xor_b32 v{vt}, v{vt}, v{vt+1}
            v_lshlrev_b32 v{vt}, 4, v{vt}
            v_lshrrev_b32 v{vt+1}, 3, v1
            v_lshlrev_b32 v{vt+1}, 10, v{vt+1}
            v_add_u32 v{vX+par}, v{vt}, v{vt+1}
            """)
        pro(f"""
        s_lshl_b32 s{sXso}, s{S_RB}, 16
        s_lshl_b32 s{S_T0}, s{sG}, 14
        s_add_u32 s{sXso}, s{sXso}, s{S_T0}
        s_lshl_b32 s{sXm0}, s{sG}, 11
        """)
        for kq in range(8):
            for par in range(2):
                dma(pro, vX+par, S_X, (sXso, par*8192 + kq*128), (sXm0, XR + kq*8192 + par*1024))
    w128_dma_voff(pro, vD, vt, 3584)
    pro(f"""
    s_lshl_b32 s{sWso}, s{S_J}, 9
    s_lshl_b32 s{S_T0}, s{sG}, 7
    s_add_u32 s{sWso}, s{sWso}, s{S_T0}
    s_mul_i32 s{sM0}, s{sG}, {GRW}
    s_add_u32 s{sM0}, s{sM0}, {GR}
    """)
    vm = Cnt()
    def issue_w1(sg, s):
        slot = s % 3
        for mat, S_ in enumerate((S_WG, S_WU)):
            for hh in range(2):
                dma(sg, vD, S_, (sWso, (16*s + 8*hh)*3584), (sM0, slot*4096 + mat*2048 + hh*1024), vm, f"W{s}")
    for s in range(3): issue_w1(pro, s)
    t4 = wf[1]
    pro(f"""
    v_and_b32 v{t4}, 31, v1
    v_lshrrev_b32 v{t4+1}, 3, v{t4}
    v_lshlrev_b32 v{t4+1}, 10, v{t4+1}
    v_and_b32 v{t4+2}, 7, v{t4}
    v_lshlrev_b32 v{t4+2}, 7, v{t4+2}
    v_add_u32 v{t4+1}, v{t4+1}, v{t4+2}
    v_lshrrev_b32 v{t4+2}, 1, v{t4}
    v_and_b32 v{t4+2}, 7, v{t4+2}
    v_lshrrev_b32 v{t4+3}, 5, v1
    v_xor_b32 v{t4+2}, v{t4+2}, v{t4+3}
    v_lshlrev_b32 v{t4+2}, 4, v{t4+2}
    v_add_u32 v{XA}, v{t4+1}, v{t4+2}
    """)
    for seg in range(2):
        w128_read_addr(pro, WA[seg], t4, seg, 1024)
        pro(f"v_add_u32 v{WA[seg]}, s{sM0}, v{WA[seg]}")
    if pre_bar is not None: pre_bar(pro, vm)
    lg = Cnt()
    def rd_x(sg, mt, s):
        s4 = s & 3
        if s4 == 0: a = XA
        else:
            if mt == 0: sg(f"v_xor_b32 v{XB}, {s4<<5}, v{XA}")
            a = XB
        sg(f"ds_read_b128 {vr(xf[mt],4)}, v{a} offset:{XR + (s>>2)*8192 + mt*4096}"); lg.issue(f"x{mt}")
    def rd_w(sg, j, s):
        mat, seg = j & 1, j >> 1
        off = (s % 3)*4096 + mat*2048
        sg(f"ds_read_b64_tr_b16 {vr(wf[j],2)}, v{WA[seg]} offset:{off}"); lg.issue(f"w{j}")
        sg(f"ds_read_b64_tr_b16 {vr(wf[j]+2,2)}, v{WA[seg]} offset:{off+512}"); lg.issue(f"w{j}")
    def wait_lg(sg, tags):
        n = lg.wait_n(tags)
        if n is not None: sg(f"s_waitcnt lgkmcnt({n})")
    def gemm_steps(sg, nsteps, rd_b, rd_a, issue, first_zero, bars, lookahead):
        n = vm.wait_n("W0"); sg(f"s_waitcnt vmcnt({n})")
        rd_b(sg, 0, 0)
        for j in range(4): rd_a(sg, j, 0)
        rd_b(sg, 1, 0)
        for s in range(nsteps):
            if s in bars: sg("s_barrier")
            more = s + 1 < nsteps
            for mt in range(2):
                for j in range(4):
                    wait_lg(sg, [f"x{mt}", f"w{j}"] if mt == 0 or j == 0 else [])
                    c = "0" if (first_zero and s == 0) else vr(A(mt,j),16)
                    sg(f"v_mfma_f32_32x32x16_bf16 {vr(A(mt,j),16)}, {vr(wf[j],4)}, {vr(xf[mt],4)}, {c}")
                    if more:
                        if mt == 0 and j == 3:
                            n = vm.wait_n(f"W{s+1}")
                            if n is not None: sg(f"s_waitcnt vmcnt({n})")
                            rd_b(sg, 0, s+1)
                        if mt == 1:
                            rd_a(sg, j, s+1)
                            if j == 3: rd_b(sg, 1, s+1)
                    if mt == 1 and j == 0 and s + lookahead < nsteps:
                        pass
            if s + lookahead < nsteps: issue(sg, s + lookahead)
    g1 = Seg("g1")
    gemm_steps(g1, 32, rd_x, rd_w, issue_w1, True, bars_g1, 3)
    g1("s_nop 7\ns_nop 3")
    vH = XB
    g1(f"v_lshlrev_b32 v{vH}, 4, v1\nv_add_u32 v{vH}, s{sM0}, v{vH}")
    for mt in range(2):
        for ft in range(2):
            G, Uu = A(mt, 2*ft), A(mt, 2*ft+1)
            for r in range(16):
                g1(f"v_max_f32 v{G+r}, 0, v{G+r}")
            for r in range(16):
                g1(f"v_mul_f32 v{G+r}, v{G+r}, v{Uu+r}")
            for p in range(8):
                g1(f"v_cvt_pk_bf16_f32 v{Uu+p}, v{G+2*p}, v{G+2*p+1}")
            for b in range(2):
                g1(f"ds_write_b128 v{vH}, {vr(Uu+4*b,4)} offset:{(mt*4 + 2*ft + b)*1024}")
    g1("s_waitcnt lgkmcnt(0)")
    lg.q = []
    g2 = Seg("g2")
    g2(f"""
    v_lshrrev_b32 v{vt}, 4, v1
    v_lshlrev_b32 v{vt+1}, 2, v{vt}
    v_and_b32 v{vt+2}, 15, v1
    v_xor_b32 v{vt+1}, v{vt+1}, v{vt+2}
    v_lshlrev_b32 v{vt+1}, 4, v{vt+1}
    v_lshlrev_b32 v{vt}, 10, v{vt}
    v_add_u32 v{vD}, v{vt}, v{vt+1}
    s_lshl_b32 s{sWso}, s{S_J}, 18
    s_lshl_b32 s{S_T0}, s{sG}, 8
    s_add_u32 s{sWso}, s{sWso}, s{S_T0}
    s_lshl_b32 s{sD2}, s{sG}, 14
    s_add_u32 s{sD2}, s{sD2}, {G2R}
    """)
    WN = [WA[0], WA[1], WC[0], WC[1]]
    g2(f"""
    v_and_b32 v{vt}, 15, v1
    v_lshrrev_b32 v{vt}, 2, v{vt}
    v_lshlrev_b32 v{vt+1}, 8, v{vt}
    v_lshlrev_b32 v{vt}, 6, v{vt}
    v_add_u32 v{vt+1}, v{vt+1}, v{vt}
    v_lshrrev_b32 v{vt}, 4, v1
    v_and_b32 v{vt}, 1, v{vt}
    v_lshlrev_b32 v{vt}, 5, v{vt}
    v_add_u32 v{vt+1}, v{vt+1}, v{vt}
    v_and_b32 v{vt}, 3, v1
    v_lshlrev_b32 v{vt}, 3, v{vt}
    v_add_u32 v{vt+1}, v{vt+1}, v{vt}
    v_lshrrev_b32 v{vt}, 5, v1
    v_lshlrev_b32 v{vt}, 10, v{vt}
    v_add_u32 v{vt+1}, v{vt+1}, v{vt}
    v_add_u32 v{WN[0]}, s{sD2}, v{vt+1}
    """)
    for nt in range(1, 4): g2(f"v_xor_b32 v{WN[nt]}, {nt<<6}, v{WN[0]}")
    g2(f"v_lshlrev_b32 v{XA}, 4, v1\nv_add_u32 v{XA}, {GR}, v{XA}")
    g2("s_barrier")
    vm.q = []
    def issue_w2(sg, s):
        slot = s % 4
        for q in range(4):
            dma(sg, vD, S_WD, (sWso, (16*s + 4*q)*1024), (sD2, slot*4096 + q*1024), vm, f"W{s}")
    for s in range(4): issue_w2(g2, s)
    def rd_h(sg, mt, s):
        off = (s >> 2)*GRW + (mt*4 + (s & 3))*1024
        sg(f"ds_read_b128 {vr(xf[mt],4)}, v{XA} offset:{off}"); lg.issue(f"x{mt}")
    def rd_wd(sg, j, s):
        off = (s % 4)*4096
        sg(f"ds_read_b64_tr_b16 {vr(wf[j],2)}, v{WN[j]} offset:{off}"); lg.issue(f"w{j}")
        sg(f"ds_read_b64_tr_b16 {vr(wf[j]+2,2)}, v{WN[j]} offset:{off+2048}"); lg.issue(f"w{j}")
    gemm_steps(g2, 16, rd_h, rd_wd, issue_w2, True, bars_g2, 4)
    g2("s_nop 7\ns_nop 3")
    g2(f"""
    s_lshl_b32 s{S_T0}, s{S_J}, 21
    s_lshl_b32 s{S_T0+1}, s{S_RB}, 16
    s_add_u32 s{S_T0}, s{S_T0}, s{S_T0+1}
    s_lshl_b32 s{S_T0+1}, s{sG}, 13
    s_add_u32 s{S_T0}, s{S_T0}, s{S_T0+1}
    s_add_u32 s{sT}, s{S_T0}, {PF}
    v_lshlrev_b32 v{vD}, 4, v1
    """)
    for mt in range(2):
        for j in range(4):
            a = A(mt, j)
            for p in range(8): g2(f"v_cvt_pk_bf16_f32 v{a+p}, v{a+2*p}, v{a+2*p+1}")
            g2(f"s_add_u32 s{S_DT}, s{sT}, {mt*32768 + j*2048}")
            g2(f"buffer_store_dwordx4 {vr(a,4)}, v{vD}, {srd(S_WS)}, s{S_DT} offen {sc}")
            g2(f"buffer_store_dwordx4 {vr(a+4,4)}, v{vD}, {srd(S_WS)}, s{S_DT} offen offset:1024 {sc}")
    check(pro.lines + g1.lines + g2.lines, name + ":ffn")
    return pro, g1, g2
```

```python
from common import *
from phase_q import w128_dma_voff, w128_read_addr
WOR = 0
OFR = 65536

def final_loads(sg, R, nw):
    vt = R.alloc("flt", 2); vW = R.alloc("flW"); vL = R.alloc("flL")
    w128_dma_voff(sg, vW, vt, 1024)
    sg(f"v_lshlrev_b32 v{vL}, 4, v1")
    SR = Regs(S_ROLE, 68, "s")
    sA, sB, sC, sD = [SR.alloc(n) for n in "a b c d".split()]
    sg(f"""
    s_lshl_b32 s{sA}, s{S_J}, 7
    s_lshl_b32 s{sB}, s{S_RB}, 16
    s_add_u32 s{sB}, s{sB}, {OF}
    s_mov_b32 s{sC}, s{S_W}
    """)
    n_iter = (64 + nw - 1)//nw
    for it in range(n_iter):
        lab = f"fl_skip_{it}"
        if (it+1)*nw > 64: sg(f"s_cmp_ge_u32 s{sC}, 64\ns_cbranch_scc1 {lab}_@NAME@")
        sg(f"""
        s_lshl_b32 s{sD}, s{sC}, 10
        s_add_u32 m0, s{sD}, {WOR}
        s_lshl_b32 s{S_T0}, s{sC}, 13
        s_add_u32 s{S_T0}, s{S_T0}, s{sA}
        buffer_load_dwordx4 v{vW}, {srd(S_WO)}, s{S_T0} offen lds
        s_add_u32 m0, s{sD}, {OFR}
        s_add_u32 s{S_T0}, s{sD}, s{sB}
        buffer_load_dwordx4 v{vL}, {srd(S_WS)}, s{S_T0} offen lds
        """)
        if (it+1)*nw > 64: sg(f"{lab}_@NAME@:")
        sg(f"s_add_u32 s{sC}, s{sC}, {nw}")

def final_compute(name, wave_reg_expr):
    sg = Seg("final")
    R = Regs(2, 168)
    vt = R.alloc("t", 4); WA = R.alloc("WA"); OA = R.alloc("OA"); vL = R.alloc("L"); vG = R.alloc("g")
    acc = R.alloc("acc", 16, 4); bsum = R.alloc("b", 16, 4)
    of = [R.alloc(f"of{i}", 4, 4) for i in range(4)]; wf = [R.alloc(f"wf{i}", 4, 4) for i in range(4)]
    pf = R.alloc("pf", 56, 4)
    SR = Regs(S_ROLE+8, 68, "s")
    sI, sMT, sNT, sP = [SR.alloc(n) for n in "i mt nt p".split()]
    sg(wave_reg_expr(sI))
    sg(f"""
    s_and_b32 s{sMT}, s{sI}, 1
    s_lshr_b32 s{sNT}, s{sI}, 1
    v_lshlrev_b32 v{vL}, 4, v1
    """)
    sg(f"""
    s_lshl_b32 s{sP}, s{S_RB}, 16
    s_lshl_b32 s{S_T0}, s{sMT}, 15
    s_add_u32 s{sP}, s{sP}, s{S_T0}
    s_lshl_b32 s{S_T0}, s{S_J}, 1
    s_add_u32 s{S_T0}, s{S_T0}, s{sNT}
    s_lshl_b32 s{S_T0}, s{S_T0}, 11
    s_add_u32 s{sP}, s{sP}, s{S_T0}
    s_add_u32 s{sP}, s{sP}, {PF}
    """)
    for c in range(7):
        sg(f"s_add_u32 s{S_DT}, s{sP}, {c << 21}")
        sg(f"buffer_load_dwordx4 {vr(pf+8*c,4)}, v{vL}, {srd(S_WS)}, s{S_DT} offen")
        sg(f"buffer_load_dwordx4 {vr(pf+8*c+4,4)}, v{vL}, {srd(S_WS)}, s{S_DT} offen offset:1024")
    sg(f"""
    s_lshl_b32 s{S_T0}, s{S_RB}, 8
    s_lshl_b32 s{S_T0+1}, s{sMT}, 7
    s_add_u32 s{S_T0}, s{S_T0}, s{S_T0+1}
    s_add_u32 s{S_T0}, s{S_T0}, {GV}
    v_and_b32 v{vt}, 31, v1
    v_lshlrev_b32 v{vt}, 2, v{vt}
    buffer_load_dword v{vG}, v{vt}, {srd(S_WS)}, s{S_T0} offen
    """)
    w128_read_addr(sg, WA, vt, ("s", sNT), 512)
    sg(f"v_add_u32 v{WA}, {WOR}, v{WA}" if WOR else "")
    sg(f"s_lshl_b32 s{S_T0}, s{sMT}, 15\ns_add_u32 s{S_T0}, s{S_T0}, {OFR}\nv_add_u32 v{OA}, s{S_T0}, v{vL}")
    return sg, dict(R=R, vt=vt, WA=WA, OA=OA, vL=vL, vG=vG, acc=acc, bsum=bsum, of=of, wf=wf, pf=pf, sMT=sMT, sNT=sNT)

def final_gemm(sg, I_):
    WA, OA, acc, of, wf = I_["WA"], I_["OA"], I_["acc"], I_["of"], I_["wf"]
    lg = Cnt()
    def rd(kb):
        b = kb & 3
        sg(f"ds_read_b128 {vr(of[b],4)}, v{OA} offset:{kb*1024}"); lg.issue(kb)
        sg(f"ds_read_b64_tr_b16 {vr(wf[b],2)}, v{WA} offset:{kb*2048}"); lg.issue(kb)
        sg(f"ds_read_b64_tr_b16 {vr(wf[b]+2,2)}, v{WA} offset:{kb*2048+1024}"); lg.issue(kb)
    for kb in range(3): rd(kb)
    for kb in range(32):
        if kb + 3 < 32: rd(kb+3)
        sg(f"s_waitcnt lgkmcnt({lg.wait_n(kb)})")
        c = "0" if kb == 0 else vr(acc,16)
        sg(f"v_mfma_f32_32x32x16_bf16 {vr(acc,16)}, {vr(wf[kb&3],4)}, {vr(of[kb&3],4)}, {c}")

def final_bsum(sg, I_):
    pf, bsum = I_["pf"], I_["bsum"]
    vt = I_["vt"]
    for p in range(8):
        sg(f"v_lshlrev_b32 v{bsum+2*p}, 16, v{pf+p}\nv_and_b32 v{bsum+2*p+1}, 0xffff0000, v{pf+p}")
    for c in range(1, 7):
        for p in range(8):
            q = pf + 8*c + p
            sg(f"v_lshlrev_b32 v{vt}, 16, v{q}\nv_and_b32 v{vt+1}, 0xffff0000, v{q}")
            sg(f"v_add_f32 v{bsum+2*p}, v{bsum+2*p}, v{vt}\nv_add_f32 v{bsum+2*p+1}, v{bsum+2*p+1}, v{vt+1}")

def final_epilogue(sg, I_):
    acc, bsum, vG, vt, pf = I_["acc"], I_["bsum"], I_["vG"], I_["vt"], I_["pf"]
    sMT, sNT = I_["sMT"], I_["sNT"]
    for r in range(16):
        sg(f"v_sub_f32 v{acc+r}, v{acc+r}, v{bsum+r}")
    for r in range(16):
        sg(f"v_fma_f32 v{acc+r}, v{vG}, v{acc+r}, v{bsum+r}")
    pk = pf
    for p in range(8): sg(f"v_cvt_pk_bf16_f32 v{pk+p}, v{acc+2*p}, v{acc+2*p+1}")
    sg("s_nop 1")
    sg(f"v_permlane32_swap_b32 v{pk}, v{pk+2}\nv_permlane32_swap_b32 v{pk+1}, v{pk+3}")
    sg(f"v_permlane32_swap_b32 v{pk+4}, v{pk+6}\nv_permlane32_swap_b32 v{pk+5}, v{pk+7}")
    sg(f"""
    s_lshl_b32 s{S_T0}, s{S_RB}, 16
    s_lshl_b32 s{S_T0+1}, s{sMT}, 15
    s_add_u32 s{S_T0}, s{S_T0}, s{S_T0+1}
    s_lshl_b32 s{S_T0+1}, s{S_J}, 7
    s_add_u32 s{S_T0}, s{S_T0}, s{S_T0+1}
    s_lshl_b32 s{S_T0+1}, s{sNT}, 6
    s_add_u32 s{S_T0}, s{S_T0}, s{S_T0+1}
    v_and_b32 v{vt}, 31, v1
    v_lshlrev_b32 v{vt}, 10, v{vt}
    v_lshrrev_b32 v{vt+1}, 5, v1
    v_lshlrev_b32 v{vt+1}, 4, v{vt+1}
    v_add_u32 v{vt}, v{vt}, v{vt+1}
    """)
    sg(f"buffer_store_dwordx4 {vr(pk,4)}, v{vt}, {srd(S_OUT)}, s{S_T0} offen")
    sg(f"buffer_store_dwordx4 {vr(pk+4,4)}, v{vt}, {srd(S_OUT)}, s{S_T0} offen offset:32")

def build_k3(name):
    pro = Seg("pro"); prologue(pro, f"{name}_end")
    R = Regs(100, 168)
    ld = Seg("ld"); final_loads(ld, R, 12)
    ld.lines = [l.replace("@NAME@", name) for l in ld.lines]
    ld(f"s_cmp_ge_u32 s{S_W}, 4\ns_cbranch_scc1 {name}_idle")
    cp, I_ = final_compute(name, lambda sI: f"s_mov_b32 s{sI}, s{S_W}")
    stamp(cp, 1)
    cp("s_waitcnt vmcnt(0)\ns_barrier")
    stamp(cp, 2)
    final_gemm(cp, I_)
    final_bsum(cp, I_)
    cp("s_nop 4")
    final_epilogue(cp, I_)
    cp(f"s_branch {name}_fin")
    idle = Seg("idle"); idle(f"{name}_idle:\ns_waitcnt vmcnt(0)\ns_barrier")
    stamp(idle, 1); stamp(idle, 2)
    fin = Seg("fin"); fin(f"{name}_fin:"); stamp(fin, 3); fin("s_waitcnt vmcnt(0)"); stamp(fin, 4); stamp_flush(fin, 2, 5); fin(f"{name}_end:\ns_endpgm")
    check(pro.lines + ld.lines + cp.lines + fin.lines, name)
    return kernel_text(name, [pro, ld, cp, idle, fin], 168), descriptor(name, 168)
```

```python
from common import *
XR = 0
WR = 65536
WSLOT = 24576

def x_read_addr(sg, XA, vt, mt_sreg):
    sg(f"""
    v_and_b32 v{vt}, 31, v1
    v_lshrrev_b32 v{vt+1}, 3, v{vt}
    v_lshlrev_b32 v{vt+1}, 10, v{vt+1}
    v_and_b32 v{vt+2}, 7, v{vt}
    v_lshlrev_b32 v{vt+2}, 7, v{vt+2}
    v_add_u32 v{vt+1}, v{vt+1}, v{vt+2}
    v_lshrrev_b32 v{vt+2}, 1, v{vt}
    v_and_b32 v{vt+2}, 7, v{vt+2}
    v_lshrrev_b32 v{vt+3}, 5, v1
    v_xor_b32 v{vt+2}, v{vt+2}, v{vt+3}
    v_lshlrev_b32 v{vt+2}, 4, v{vt+2}
    v_add_u32 v{XA[0]}, v{vt+1}, v{vt+2}
    """)
    if mt_sreg is not None:
        sg(f"s_lshl_b32 s{S_T0}, s{mt_sreg}, 12\nv_add_u32 v{XA[0]}, s{S_T0}, v{XA[0]}")
    for s4 in range(1, 4):
        sg(f"v_xor_b32 v{XA[s4]}, {s4<<5}, v{XA[0]}")

def x_dma_voff(sg, vX, vt):
    sg(f"""
    s_and_b32 s{S_T0}, s{S_W}, 1
    s_lshl_b32 s{S_T0}, s{S_T0}, 2
    v_lshrrev_b32 v{vt}, 4, v1
    v_add_u32 v{vt}, s{S_T0}, v{vt}
    v_and_b32 v{vt+1}, 7, v1
    v_xor_b32 v{vt}, v{vt}, v{vt+1}
    v_lshlrev_b32 v{vt}, 4, v{vt}
    v_lshrrev_b32 v{vt+1}, 3, v1
    v_lshlrev_b32 v{vt+1}, 10, v{vt+1}
    v_add_u32 v{vX}, v{vt}, v{vt+1}
    """)

def w128_dma_voff(sg, vW, vt, rowstride):
    sg(f"""
    v_lshrrev_b32 v{vt}, 4, v1
    v_and_b32 v{vt}, 1, v{vt}
    v_lshlrev_b32 v{vt}, 2, v{vt}
    v_and_b32 v{vt+1}, 7, v1
    v_xor_b32 v{vt}, v{vt}, v{vt+1}
    v_lshlrev_b32 v{vt}, 4, v{vt}
    v_lshrrev_b32 v{vt+1}, 3, v1
    s_mov_b32 s{S_T0}, {rowstride}
    v_mul_lo_u32 v{vt+1}, v{vt+1}, s{S_T0}
    v_add_u32 v{vW}, v{vt}, v{vt+1}
    """)

def w128_read_addr(sg, vA, vt, seg, hmul):
    sg(f"""
    v_and_b32 v{vt}, 15, v1
    v_lshrrev_b32 v{vt}, 2, v{vt}
    v_lshlrev_b32 v{vA}, 7, v{vt}
    v_lshrrev_b32 v{vt}, 1, v{vt}
    """)
    if isinstance(seg, tuple): sg(f"v_xor_b32 v{vt}, s{seg[1]}, v{vt}")
    elif seg: sg(f"v_xor_b32 v{vt}, {seg}, v{vt}")
    sg(f"""
    v_lshlrev_b32 v{vt}, 6, v{vt}
    v_add_u32 v{vA}, v{vA}, v{vt}
    v_lshrrev_b32 v{vt}, 4, v1
    v_and_b32 v{vt}, 1, v{vt}
    v_lshlrev_b32 v{vt}, 5, v{vt}
    v_add_u32 v{vA}, v{vA}, v{vt}
    v_and_b32 v{vt}, 3, v1
    v_lshlrev_b32 v{vt}, 3, v{vt}
    v_add_u32 v{vA}, v{vA}, v{vt}
    v_lshrrev_b32 v{vt}, 5, v1
    v_mul_u32_u24 v{vt}, {hmul}, v{vt}
    v_add_u32 v{vA}, v{vA}, v{vt}
    """)

def phase_q(role, sc="", with_g=True):
    sg = Seg("phaseq_" + role)
    R = Regs(2, 168)
    vt = R.alloc("t", 8)
    vX = R.alloc("vX"); vW = R.alloc("vW")
    XA = [R.alloc(f"XA{i}") for i in range(4)]
    WA = R.alloc("WA"); WAc = R.alloc("WAc")
    acc = R.alloc("acc", 16, 4)
    xf = [R.alloc(f"xf{i}", 4, 4) for i in range(4)]
    wf = [R.alloc(f"wf{i}", 4, 4) for i in range(4)]
    SR = Regs(S_ROLE, 68, "s")
    sMT, sNT, sMAT, sSEG, sXso, sWso, sM0a, sWso2, sXm0, sST = [SR.alloc(f"q{i}") for i in range(10)]
    T1, T2 = S_T0+1, S_T0+2
    hasx = role == "QK"
    sg(f"""
    s_and_b32 s{sMT}, s{S_W}, 1
    s_lshr_b32 s{sNT}, s{S_W}, 1
    s_lshr_b32 s{sMAT}, s{sNT}, 1
    s_and_b32 s{sSEG}, s{sNT}, 1
    """)
    sg(f"""
    s_lshl_b32 s{S_T0}, s{S_W}, 1
    s_lshr_b32 s{sWso2}, s{S_T0}, 3
    s_and_b32 s{S_T0}, s{S_T0}, 7
    s_mul_i32 s{sWso}, s{S_T0}, {8*3072}
    s_lshl_b32 s{sM0a}, s{sWso2}, 13
    s_lshl_b32 s{S_T0}, s{S_T0}, 10
    s_add_u32 s{sM0a}, s{sM0a}, s{S_T0}
    s_add_u32 s{sM0a}, s{sM0a}, {WR}
    s_lshl_b32 s{sWso2}, s{sWso2}, 10
    s_add_u32 s{sWso}, s{sWso}, s{sWso2}
    s_lshl_b32 s{S_T0}, s{S_J}, 7
    s_add_u32 s{sWso}, s{sWso}, s{S_T0}      ; + j*128
    """)
    w128_dma_voff(sg, vW, vt, 3072)
    if hasx:
        x_dma_voff(sg, vX, vt)
        sg(f"""
        s_lshl_b32 s{sXso}, s{S_RB}, 16
        s_lshl_b32 s{S_T0}, s{S_W}, 13
        s_add_u32 s{sXso}, s{sXso}, s{S_T0}
        s_lshl_b32 s{sXm0}, s{S_W}, 10
        """)
    vm = Cnt()
    def issue_w(s):
        slot = s % 4
        for p in range(2):
            dma(sg, vW, S_WQKV, (sWso, s*64*3072 + p*8*3072), (sM0a, slot*WSLOT + p*1024), vm, f"W{s}")
    def issue_x(s):
        dma(sg, vX, S_X, (sXso, s*128), (sXm0, XR + s*8192), vm, f"X{s}")
    for s in range(4):
        if hasx: issue_x(s)
        issue_w(s)
    if hasx:
        for s in range(4, 8): issue_x(s)
    x_read_addr(sg, XA, vt, sMT)
    w128_read_addr(sg, WA, vt, ("s", sSEG), 1024)
    sg(f"s_lshl_b32 s{S_T0}, s{sMAT}, 13\ns_add_u32 s{S_T0}, s{S_T0}, {WR}\nv_add_u32 v{WA}, s{S_T0}, v{WA}")
    first = True
    stamp(sg, 1)
    for s in range(8):
        n = vm.wait_n([f"W{s}", f"X{s}"])
        sg(f"s_waitcnt vmcnt({n})\ns_barrier")
        if s == 0: stamp(sg, 2)
        if s == 4: stamp(sg, 3)
        if 1 <= s <= 4: issue_w(s+3)
        slot = s % 4
        if slot: sg(f"v_add_u32 v{WAc}, {slot*WSLOT}, v{WA}"); wa = WAc
        else: wa = WA
        for s4 in range(4):
            sg(f"ds_read_b128 {vr(xf[s4],4)}, v{XA[s4]} offset:{XR + s*8192}")
            sg(f"ds_read_b64_tr_b16 {vr(wf[s4],2)}, v{wa} offset:{s4*2048}")
            sg(f"ds_read_b64_tr_b16 {vr(wf[s4]+2,2)}, v{wa} offset:{s4*2048+512}")
        for s4 in range(4):
            sg(f"s_waitcnt lgkmcnt({9-3*s4})")
            A, B = (wf[s4], xf[s4]) if hasx else (xf[s4], wf[s4])
            c = "0" if first else vr(acc,16)
            sg(f"v_mfma_f32_32x32x16_bf16 {vr(acc,16)}, {vr(A,4)}, {vr(B,4)}, {c}")
            first = False
    stamp(sg, 4)
    pk = xf[0]
    assert xf[1] == xf[0] + 4
    sg(f"s_lshl_b32 s{sST}, s{S_RB}, 1\ns_add_u32 s{sST}, s{sST}, s{sMT}\ns_lshl_b32 s{sST}, s{sST}, 10   ; stile*1024")
    if hasx:
        sg(f"""
        s_lshl_b32 s{S_T0}, s{S_J}, 2
        s_lshl_b32 s{T1}, s{sSEG}, 1
        s_add_u32 s{S_T0}, s{S_T0}, s{T1}
        s_lshl_b32 s{S_T0}, s{S_T0}, 16
        s_add_u32 s{sST}, s{sST}, s{S_T0}
        s_cmp_eq_u32 s{sMAT}, 0
        s_cselect_b32 s{S_T0}, {QF}, {KF}
        s_cselect_b32 s{T1}, {hex(f2u(CLOG))}, 1.0
        s_add_u32 s{sST}, s{sST}, s{S_T0}
        s_add_u32 s{T2}, s{sST}, 65536
        v_lshlrev_b32 v{vt}, 4, v1
        s_nop 7
        """)
        for r in range(16): sg(f"v_mul_f32 v{acc+r}, s{T1}, v{acc+r}")
        for p in range(8): sg(f"v_cvt_pk_bf16_f32 v{pk+p}, v{acc+2*p}, v{acc+2*p+1}")
        sg(f"buffer_store_dwordx4 {vr(pk,4)}, v{vt}, {srd(S_WS)}, s{sST} offen {sc}")
        sg(f"buffer_store_dwordx4 {vr(pk+4,4)}, v{vt}, {srd(S_WS)}, s{T2} offen {sc}")
    else:
        sg(f"""
        s_lshl_b32 s{S_T0}, s{S_J}, 2
        s_lshl_b32 s{T1}, s{sSEG}, 1
        s_add_u32 s{S_T0}, s{S_T0}, s{T1}
        s_lshl_b32 s{S_T0}, s{S_T0}, 16
        s_add_u32 s{sST}, s{sST}, s{S_T0}
        s_add_u32 s{sST}, s{sST}, {VF}
        v_and_b32 v{vt}, 15, v1
        v_lshlrev_b32 v{vt}, 4, v{vt}
        v_lshrrev_b32 v{vt+1}, 5, v1
        v_lshlrev_b32 v{vt+1}, 8, v{vt+1}
        v_add_u32 v{vt}, v{vt}, v{vt+1}
        v_lshrrev_b32 v{vt+1}, 4, v1
        v_and_b32 v{vt+1}, 1, v{vt+1}
        v_lshlrev_b32 v{vt+1}, 16, v{vt+1}
        v_add_u32 v{vt}, v{vt}, v{vt+1}
        s_nop 1
        """)
        for p in range(8): sg(f"v_cvt_pk_bf16_f32 v{pk+p}, v{acc+2*p}, v{acc+2*p+1}")
        sg(f"buffer_store_dwordx4 {vr(pk,4)}, v{vt}, {srd(S_WS)}, s{sST} offen {sc}")
        sg(f"buffer_store_dwordx4 {vr(pk+4,4)}, v{vt}, {srd(S_WS)}, s{sST} offen offset:512 {sc}")
    return sg, dict(XA=XA, sMT=sMT, R=R, vt=vt, xf=xf, wf=wf, acc=acc)

def gate_part(info, sc=""):
    sg = Seg("gate")
    XA, sMT, vt, acc = info["XA"], info["sMT"], info["vt"], info["acc"]
    T1 = S_T0+1
    R = info["R"]
    gw = R.alloc("gw", 32, 4); xg = R.alloc("xg", 32, 4)
    va = acc
    sg(f"v_lshrrev_b32 v{vt+2}, 5, v1\nv_lshlrev_b32 v{vt+2}, 4, v{vt+2}\nv_mov_b32 v{va}, 0\nv_mov_b32 v{va+1}, 0")
    for b in range(4):
        for q in range(8):
            s = b*8+q
            sg(f"buffer_load_dwordx4 {vr(gw+4*q,4)}, v{vt+2}, {srd(S_GW)}, 0 offen offset:{s*32}")
            sg(f"ds_read_b128 {vr(xg+4*q,4)}, v{XA[s&3]} offset:{XR + (s>>2)*8192}")
        sg("s_waitcnt vmcnt(0) lgkmcnt(0)")
        for q in range(8):
            for p in range(4):
                a = va + (p & 1)
                sg(f"v_dot2_f32_bf16 v{a}, v{xg+4*q+p}, v{gw+4*q+p}, v{a}")
    sg(f"""
    s_nop 2
    v_add_f32 v{va}, v{va}, v{va+1}
    s_nop 0
    v_mov_b32 v{va+1}, v{va}
    s_nop 1
    v_permlane32_swap_b32 v{va}, v{va+1}
    s_nop 1
    v_add_f32 v{va}, v{va}, v{va+1}
    v_mul_f32 v{va}, {hex(f2u(-1.4426950408889634))}, v{va}
    v_exp_f32 v{va}, v{va}
    s_nop 0
    v_add_f32 v{va}, 1.0, v{va}
    v_rcp_f32 v{va}, v{va}
    s_lshl_b32 s{S_T0}, s{S_RB}, 8
    s_lshl_b32 s{T1}, s{sMT}, 7
    s_add_u32 s{S_T0}, s{S_T0}, s{T1}
    s_add_u32 s{S_T0}, s{S_T0}, {GV}
    v_and_b32 v{vt}, 31, v1
    v_lshlrev_b32 v{vt}, 2, v{vt}
    buffer_store_dword v{va}, v{vt}, {srd(S_WS)}, s{S_T0} offen {sc}
    """)
    return sg

def build_k1(name):
    pro = Seg("pro"); prologue(pro, f"{name}_end")
    pro(f"s_cmp_ge_u32 s{S_W}, 8\ns_cbranch_scc1 {name}_v")
    qk, _ = phase_q("QK")
    qk(f"s_branch {name}_fin")
    v, info = phase_q("V")
    v.lines.insert(0, f"{name}_v:")
    v(f"s_cmp_lg_u32 s{S_J}, 7\ns_cbranch_scc1 {name}_fin\ns_cmp_ge_u32 s{S_W}, 10\ns_cbranch_scc1 {name}_fin")
    g = gate_part(info)
    fin = Seg("fin"); fin(f"{name}_fin:"); stamp(fin, 5); fin("s_waitcnt vmcnt(0)"); stamp(fin, 6); stamp_flush(fin, 0, 7); fin(f"{name}_end:\ns_endpgm")
    check(pro.lines + qk.lines + fin.lines, name + ":qk")
    check(pro.lines + v.lines + g.lines + fin.lines, name + ":v")
    return kernel_text(name, [pro, qk, v, g, fin], 168), descriptor(name, 168)
```

```python
import sys
from attn import *
from ffn import *
from final import *
from phase_q import build_k1
def build_k2(name):
    pro = Seg("pro"); prologue(pro, f"{name}_end")
    pro(f"s_cmp_ge_u32 s{S_W}, 8\ns_cbranch_scc1 {name}_g")
    ap, ab, af, asl = attn_role(name)
    af(f"s_branch {name}_fin")
    g0 = Seg("g0"); g0(f"{name}_g:\ns_cmp_eq_u32 s{S_J}, 7\ns_cbranch_scc1 {name}_gidle")
    def pre_bar(sg, vm):
        stamp(sg, 1)
        sg("s_waitcnt vmcnt(12)\ns_barrier")
        stamp(sg, 2)
    gp, g1, g2 = ffn_role(name, True, bars_g1=(3,10,17,24), bars_g2=(5,11), pre_bar=pre_bar)
    stamp(g1, 3)
    g2(f"s_branch {name}_fin")
    gi = Seg("gi"); gi(f"{name}_gidle:")
    for i in range(8): gi("s_barrier")
    fin = Seg("fin"); fin(f"{name}_fin:"); stamp(fin, 4); fin("s_waitcnt vmcnt(0)"); stamp(fin, 5); stamp_flush(fin, 1, 6); fin(f"{name}_end:\ns_endpgm")
    return kernel_text(name, [pro, ap, ab, af, asl, g0, gp, g1, g2, gi, fin], 168), descriptor(name, 168)
def header():
    ref = open("gated_mix__mha_block__glu_gated_reglu__prompt.s.ref").read().split("\n")
    keep = [l for l in ref if l.startswith(";   offset") or l.startswith("; Kernarg")]
    return "\n".join(keep) + "\n"
if __name__ == "__main__":
    STAMP["on"] = len(sys.argv) > 2
    t1, d1 = build_k1("k1_kernel")
    t2, d2 = build_k2("k2_kernel")
    t3, d3 = build_k3("k3_kernel")
    hdr = header()
    for k in ("k1","k2","k3"): hdr += f"; @launch kernel={k}_kernel grid=(256,1,1) block=(768,1,1) lds=163840\n"
    hdr += ".amdgcn_target \"amdgcn-amd-amdhsa--gfx950\"\n"
    open(sys.argv[1],"w").write(hdr + t1 + t2 + t3 + d1 + d2 + d3)
```
